```python
import torch

def _softmax(x, axis=-1):
    return torch.softmax(x, dim=axis)
def _gelu(x):
    return torch.nn.functional.gelu(x, approximate="tanh")
def _silu(x):
    return torch.nn.functional.silu(x)
def _sigmoid(x):
    return torch.sigmoid(x)
def _layernorm(x, axis=-1, eps=1e-5):
    m = x.mean(dim=axis, keepdim=True)
    v = x.var(dim=axis, keepdim=True, unbiased=False)
    return (x - m) / torch.sqrt(v + eps)
def _scatter_add(tgt, idx, src, axis=0):
    return tgt.clone().index_add_(axis, idx, src)
def _segment_sum(src, seg, n):
    out = torch.zeros((n,) + src.shape[1:], dtype=src.dtype)
    return out.index_add_(0, seg, src)
def _pad(x, pw):
    flat = tuple(v for pair in reversed(pw) for v in pair)
    return torch.nn.functional.pad(x, flat)

kernel_name = 'standalone__mha_softmax__near_ridge'

def setup_inputs():

    _w = (lambda a: (lambda t: t.to(torch.bfloat16) if t.is_floating_point() else t)(torch.as_tensor(a)))
    B, H, Sq, Sk, D = 32, 32, 256, 512, 128
    return {
        "q": _w((lambda *s: torch.randn(*s, dtype=torch.bfloat16) * 0.8)(B, H, Sq, D)),
        "k": _w((lambda *s: torch.randn(*s, dtype=torch.bfloat16) * 0.8)(B, H, Sk, D)),
        "v": _w((lambda *s: torch.randn(*s, dtype=torch.bfloat16) * 0.05)(B, H, Sk, D)),
    }

def reference(q, k, v):
    scale = q.shape[-1] ** -0.5
    scores = torch.einsum("bhqd,bhkd->bhqk", q, k) * scale
    p = _softmax(scores, axis=-1)
    return torch.einsum("bhqk,bhkd->bhqd", p, v)
```

```python
import re


def R(base, n=1):
    return f"v{base}" if n == 1 else f"v[{base}:{base + n - 1}]"


def S(base, n=1):
    return f"s{base}" if n == 1 else f"s[{base}:{base + n - 1}]"


def rng(b, n):
    return set(range(b, b + n))


class I:
    __slots__ = ("text", "kind", "vd", "vu", "sd", "su", "a", "b", "c", "wide_store", "lgkm", "vm", "tag", "passes")

    def __init__(self, text, kind, vd=(), vu=(), sd=(), su=(), a=(), b=(), c=(), wide_store=False, tag=None, passes=8):
        self.text = text
        self.kind = kind
        self.vd = set(vd)
        self.vu = set(vu)
        self.sd = set(sd)
        self.su = set(su)
        self.a = set(a)
        self.b = set(b)
        self.c = set(c)
        self.wide_store = wide_store
        self.lgkm = None
        self.vm = None
        self.tag = tag
        self.passes = passes

    def states(self):
        if self.kind == "label" or self.kind == "comment":
            return 0
        if self.kind == "nop":
            return int(self.text.split()[1]) + 1
        return 1

    def __repr__(self):
        return self.text


_opnd_v = re.compile(r"(?<![a-z_])v(\d+)\b|v\[(\d+):(\d+)\]")
_opnd_s = re.compile(r"(?<![a-z_])s(\d+)\b|s\[(\d+):(\d+)\]")


def _regs(rx, t):
    out = set()
    for m in rx.finditer(t):
        if m.group(1) is not None:
            out.add(int(m.group(1)))
        else:
            out |= set(range(int(m.group(2)), int(m.group(3)) + 1))
    return out


def _split_ops(s):
    return [x.strip() for x in s.split(",")]


TRANS = ("v_exp_f32", "v_rcp_f32", "v_log_f32", "v_rsq_f32", "v_sqrt_f32")


def sregs(t):
    r = _regs(_opnd_s, t)
    if re.search(r"\bm0\b", t):
        r.add("m0")
    if re.search(r"\bvcc\b", t):
        r.add("vcc")
    if re.search(r"\bexec\b", t):
        r.add("exec")
    return r


def V(text, tag=None):
    op, rest = text.split(None, 1)
    ops = _split_ops(rest)
    dst, srcs = ops[0], ",".join(ops[1:])
    kind = "trans" if op.replace("_e32", "").replace("_e64", "") in TRANS else "valu"
    vd = _regs(_opnd_v, dst)
    sd = sregs(dst) if not vd else set()
    vu = _regs(_opnd_v, srcs)
    su = sregs(srcs)
    if op.startswith("v_fmac") or op.startswith("v_dot2c") or op.startswith("v_pk_fmac"):
        vu |= vd
    if op.startswith("v_permlane"):
        kind = "permlane"
        vd = vd | vu
        vu = set(vd)
    if op.startswith("v_readfirstlane") or op.startswith("v_readlane"):
        kind = "readlane"
    return I(text, kind, vd=vd, vu=vu, sd=sd, su=su, tag=tag)


def SA(text, tag=None):
    op, rest = (text.split(None, 1) + [""])[:2]
    ops = _split_ops(rest)
    if op.startswith("s_cmp") or op.startswith("s_bitcmp"):
        return I(text, "salu", sd={"scc"}, su=sregs(rest), tag=tag)
    sd = sregs(ops[0])
    su = sregs(",".join(ops[1:]))
    return I(text, "salu", sd=sd, su=su, tag=tag)


def MFMA(d, a, b, c, tag=None, shape="32x32x16"):
    n = 16 if shape == "32x32x16" else 4
    passes = 8 if shape == "32x32x16" else 4
    cs = "0" if c is None else R(c, n)
    t = f"v_mfma_f32_{shape}_bf16 {R(d, n)}, {R(a, 4)}, {R(b, 4)}, {cs}"
    cc = set() if c is None else rng(c, n)
    return I(t, "mfma", vd=rng(d, n), vu=rng(a, 4) | rng(b, 4) | cc, a=rng(a, 4), b=rng(b, 4), c=cc, tag=tag, passes=passes)


def DSR(op, d, n, addr, off=0, tag=None):
    o = f" offset:{off}" if off else ""
    assert 0 <= off < 65536
    return I(f"{op} {R(d, n)}, v{addr}{o}", "dsr", vd=rng(d, n), vu={addr}, tag=tag)


def DSW(op, addr, s, n, off=0, tag=None):
    o = f" offset:{off}" if off else ""
    assert 0 <= off < 65536
    return I(f"{op} v{addr}, {R(s, n)}{o}", "dsw", vu={addr} | rng(s, n), tag=tag)


def DMA(voff, srd, soff, off=0, flags="", tag=None):
    o = f" offset:{off}" if off else ""
    so = soff if isinstance(soff, str) else f"s{soff}"
    t = f"buffer_load_dwordx4 v{voff}, {S(srd, 4)}, {so} offen{o}{flags} lds"
    return I(t, "dma", vu={voff}, su=rng(srd, 4) | sregs(so) | {"m0"}, tag=tag)


def STORE4(data, voff, srd, soff, off=0, flags="", tag=None):
    o = f" offset:{off}" if off else ""
    so = soff if isinstance(soff, str) else f"s{soff}"
    t = f"buffer_store_dwordx4 {R(data, 4)}, v{voff}, {S(srd, 4)}, {so} offen{o}{flags}"
    return I(t, "vst", vu={voff} | rng(data, 4), su=rng(srd, 4) | sregs(so), wide_store=True, tag=tag, a=rng(data, 4))


def LOAD4(data, voff, srd, soff, off=0, flags="", tag=None):
    o = f" offset:{off}" if off else ""
    so = soff if isinstance(soff, str) else f"s{soff}"
    t = f"buffer_load_dwordx4 {R(data, 4)}, v{voff}, {S(srd, 4)}, {so} offen{o}{flags}"
    return I(t, "vld", vd=rng(data, 4), vu={voff}, su=rng(srd, 4) | sregs(so), tag=tag)


def WAIT(vm=None, lgkm=None):
    parts = []
    if vm is not None:
        assert 0 <= vm <= 63
        parts.append(f"vmcnt({vm})")
    if lgkm is not None:
        assert 0 <= lgkm <= 15
        parts.append(f"lgkmcnt({lgkm})")
    i = I("s_waitcnt " + " ".join(parts), "wait")
    i.lgkm = lgkm
    i.vm = vm
    return i


def NOP(n):
    assert 0 <= n <= 15
    return I(f"s_nop {n}", "nop")


def RAW(text, kind="other"):
    return I(text, kind)


def LABEL(n):
    return I(f"{n}:", "label")


def BR(op, target):
    return I(f"{op} {target}", "branch", su={"scc"} if "scc" in op else set())


def BAR():
    return I("s_barrier", "barrier")


def COMMENT(t):
    return I(f"; {t}", "comment")


VALU_KINDS = ("valu", "trans", "permlane", "readlane")
VMEM_KINDS = ("dma", "vst", "vld")


def required_states(p, c):
    need = 0
    pk, ck = p.kind, c.kind
    if pk in VALU_KINDS:
        if ck == "mfma" and (p.vd & c.vu):
            need = max(need, 2)
        if pk == "trans" and ck in ("valu", "permlane", "readlane", "mfma") and (p.vd & c.vu):
            need = max(need, 1)
        if pk == "trans" and ck in ("dsr", "dsw") + VMEM_KINDS and (p.vd & c.vu):
            need = max(need, 1)
        if ck == "permlane" and (p.vd & c.vu):
            need = max(need, 2)
        if ck == "readlane" and (p.vd & c.vu):
            need = max(need, 1)
        if p.sd:
            if ck in VMEM_KINDS and (p.sd & c.su):
                need = max(need, 5)
            if ck in VALU_KINDS and (p.sd & c.su):
                need = max(need, 2)
            if ck == "salu" and (p.sd & c.su):
                need = max(need, 1)
    if pk == "salu" and "m0" in p.sd and ck == "dma":
        need = max(need, 1)
    if pk == "mfma":
        ps = p.passes
        full = {4: 8, 8: 12}[ps]
        part = {4: 6, 8: 10}[ps]
        war = {4: 3, 8: 7}[ps]
        if ck == "mfma":
            if p.vd & (c.a | c.b):
                need = max(need, full)
            if p.vd & c.c:
                if not (p.vd == c.c and p.passes == c.passes):
                    need = max(need, part)
            if (p.vd & c.vd) and not (p.vd == c.c):
                need = max(need, part)
        elif ck in VALU_KINDS:
            if p.vd & (c.vu | c.vd):
                need = max(need, full)
            if p.c & c.vd:
                need = max(need, war)
        elif ck in ("dsr", "dsw") + VMEM_KINDS:
            if p.vd & (c.vu | c.vd):
                need = max(need, full)
    if p.wide_store:
        if ck in VALU_KINDS + ("mfma",) and (p.a & c.vd):
            need = max(need, 2)
        elif ck in ("dsr", "vld") and (p.a & c.vd):
            need = max(need, 1)
    if pk == "dsw" and ck in VALU_KINDS and (p.vu & c.vd) and "b128" in p.text:
        need = max(need, 2)
    return need


class Prog:
    def __init__(self):
        self.blocks = {}
        self.order = []

    def block(self, name, insts):
        assert name not in self.blocks
        flat = []

        def add(x):
            if isinstance(x, (list, tuple)):
                for y in x:
                    add(y)
            elif x is not None:
                flat.append(x)

        add(insts)
        self.blocks[name] = flat
        self.order.append(name)

    def _path_insts(self, path):
        out = []
        for el in path:
            if isinstance(el, tuple):
                name, start_tag, stop_tag = el
            else:
                name, start_tag, stop_tag = el, None, None
            on = start_tag is None
            for ins in self.blocks[name]:
                if not on and ins.tag == start_tag:
                    on = True
                if on:
                    out.append((name, ins))
                    if stop_tag is not None and ins.tag == stop_tag:
                        break
        return out

    def fix_hazards(self, paths, verbose=True):
        total = 0
        changed = True
        while changed:
            changed = False
            for path in paths:
                seq = self._path_insts(path)
                for idx, (bn, c) in enumerate(seq):
                    if c.kind in ("label", "comment", "nop", "wait", "barrier", "branch"):
                        continue
                    dist = 0
                    worst = 0
                    why = None
                    for k in range(idx - 1, -1, -1):
                        p = seq[k][1]
                        need = required_states(p, c)
                        if need - dist > worst:
                            worst = need - dist
                            why = p
                        dist += p.states()
                        if dist >= 20:
                            break
                    if worst > 0:
                        blk = self.blocks[bn]
                        pos = next(i for i, x in enumerate(blk) if x is c)
                        blk.insert(pos, NOP(worst - 1))
                        total += worst
                        if verbose:
                            print(f"  [hazard] {bn}: +{worst} states before '{c.text}' (producer '{why.text}')")
                        changed = True
                        break
                if changed:
                    break
        return total

    def check_lgkm(self, paths):
        ok = True
        for path in paths:
            seq = self._path_insts(path)
            pend = []
            for bn, ins in seq:
                if ins.kind == "wait" and ins.lgkm is not None:
                    if len(pend) > ins.lgkm:
                        pend = pend[len(pend) - ins.lgkm:] if ins.lgkm > 0 else []
                    continue
                touched = ins.vu | ins.vd
                for d in pend:
                    if d & touched:
                        print(f"  [lgkm] UNCOVERED in {bn}: '{ins.text}' touches pending ds_read dest")
                        ok = False
                        break
                if ins.kind == "barrier" and pend:
                    print(f"  [lgkm] barrier in {bn} with {len(pend)} outstanding DS ops")
                    ok = False
                if ins.kind == "dsr":
                    pend.append(set(ins.vd))
                elif ins.kind == "dsw":
                    pend.append(set())
        return ok

    def text(self):
        lines = []
        for n in self.order:
            for ins in self.blocks[n]:
                if ins.kind == "label":
                    lines.append(ins.text)
                else:
                    lines.append("    " + ins.text)
        return "\n".join(lines)


def cost(i):
    if i.kind == "trans":
        return 2.0
    if i.kind in ("salu", "wait"):
        return 0.5
    if i.kind in ("label", "comment"):
        return 0
    if i.kind == "dma":
        return 2.0
    return 1.0


def interleave(mf, fill, lead=0, tail_weight=1.0):
    out = list(fill[:lead])
    rest = list(fill[lead:])
    tot = sum(cost(x) for x in rest)
    n = len(mf)
    share = tot / (n - 1 + tail_weight) if n else 0
    acc = 0.0
    k = 0
    for i, m in enumerate(mf):
        out.append(m)
        lim = share * (i + 1) if i < n - 1 else 1e9
        while k < len(rest) and acc + cost(rest[k]) / 2 <= lim:
            out.append(rest[k])
            acc += cost(rest[k])
            k += 1
    out += rest[k:]
    return out


def merge(a, b, ratio=None):
    out = []
    na, nb = len(a), len(b)
    ia = ib = 0
    while ia < na or ib < nb:
        if ib >= nb or (ia < na and ia * nb <= ib * na):
            out.append(a[ia])
            ia += 1
        else:
            out.append(b[ib])
            ib += 1
    return out
```

```python
import sys
import struct
import math
from asmlib import *

opts = dict(nocompute=0, ldflags="", stflags="", prio=0, nostore=0)
for a in sys.argv[2:]:
    k, v = a.split("=", 1)
    opts[k] = int(v) if v.lstrip("-").isdigit() else v
LDF = (" " + opts["ldflags"].replace("+", " ")) if opts["ldflags"] else ""
STF = (" " + opts["stflags"].replace("+", " ")) if opts["stflags"] else ""
NOC = opts["nocompute"]

KNAME = "standalone__mha_softmax__near_ridge_kernel"

O = 0
S0, S1 = 64, 80
Q = 96
FK = 128
FV = 160
P0, P1 = 192, 200
KA = 208
VA = 216
DK0, DK1, DV, OOFF, QP = 220, 221, 222, 223, 224
M, L, NMC, ALPHA, PM, LFIN, T0, T1, T2 = 225, 226, 227, 228, 229, 230, 231, 232, 233
NVGPR = 240

AS, BS, OS = 4, 8, 12
sIT, sJ, sOFFA, sOFFB, sKSV, sVSV, sQOFF, sOOFF, sOINC = 16, 17, 18, 19, 20, 21, 22, 23, 24
sRD, sWR, sDELTA, sW2K, sC, sNC, sT0, sT1, sW = 25, 26, 27, 28, 29, 30, 31, 32, 33
sQB, sKB, sVB, sOB = 36, 38, 40, 42
NSGPR = 48

QBYTES = 0x4000000
KBYTES = 0x8000000
SLOT = 32768
CSCALE = (128 ** -0.5) * math.log2(math.e)


def f2u(x):
    return struct.unpack("<I", struct.pack("<f", x))[0]


def dma_group(m0expr0, m0expr1):
    return [
        SA(m0expr0),
        DMA(DK0, AS, sOFFA, 0, LDF),
        DMA(DK1, AS, sOFFA, 1024, LDF),
        SA(m0expr1),
        DMA(DV, BS, sOFFB, 0, LDF),
        DMA(DV, BS, sOFFB, 1024, LDF),
    ]


def adv_kv():
    return [SA(f"s_mov_b32 s{sOFFB}, s{sOFFA}"), SA(f"s_add_u32 s{sOFFA}, s{sOFFA}, 16384")]


def k_reads(kb):
    return [DSR("ds_read_b128", FK + 4 * ks, 4, KA + ks, kb * 8192) for ks in range(8)]


def v_reads(kb):
    out = []
    for kk in range(2):
        for b in range(4):
            for half in range(2):
                out.append(DSR("ds_read_b64_tr_b16", FV + (kk * 4 + b) * 4 + 2 * half, 2, VA + b,
                               16384 + kb * 8192 + kk * 4096 + half * 2048))
    return out


def qk_mfmas(sb):
    return [MFMA(sb, FK + 4 * ks, Q + 4 * ks, None if ks == 0 else sb) for ks in range(8)]


def pv_mfmas(pb):
    return [MFMA(O + 16 * b, FV + (kk * 4 + b) * 4, pb + 4 * kk, O + 16 * b) for kk in range(2) for b in range(4)]


def exp_block(sb, pb):
    out = []
    for t in range(18):
        if t < 16:
            out.append(V(f"v_fma_f32 v{sb + t}, v{sb + t}, s{sC}, v{NMC}"))
        if 0 <= t - 1 < 16:
            out.append(V(f"v_exp_f32 v{sb + t - 1}, v{sb + t - 1}"))
        if 0 <= t - 2 < 16:
            out.append(V(f"v_add_f32 v{L}, v{L}, v{sb + t - 2}"))
            if (t - 2) % 2 == 1:
                out.append(V(f"v_cvt_pk_bf16_f32 v{pb + (t - 2) // 2}, v{sb + t - 3}, v{sb + t - 2}"))
    return out


def max_finish():
    s = S1
    out = []
    out.append(V(f"v_max3_f32 v{T0}, v{PM}, v{s}, v{s + 1}"))
    out.append(V(f"v_max3_f32 v{T1}, v{M}, v{s + 8}, v{s + 9}"))
    for i in range(1, 4):
        out.append(V(f"v_max3_f32 v{T0}, v{T0}, v{s + 2 * i}, v{s + 2 * i + 1}"))
        out.append(V(f"v_max3_f32 v{T1}, v{T1}, v{s + 8 + 2 * i}, v{s + 9 + 2 * i}"))
    out.append(V(f"v_max_f32 v{T0}, v{T0}, v{T1}"))
    out.append(V(f"v_mov_b32 v{T1}, v{T0}"))
    out.append(V(f"v_permlane32_swap_b32 v{T0}, v{T1}"))
    out.append(V(f"v_max_f32 v{M}, v{T0}, v{T1}"))
    out.append(V(f"v_mul_f32 v{T2}, s{sNC}, v{M}"))
    out.append(V(f"v_sub_f32 v{T0}, v{T2}, v{NMC}"))
    out.append(V(f"v_mov_b32 v{NMC}, v{T2}"))
    out.append(V(f"v_exp_f32 v{ALPHA}, v{T0}"))
    return out


def partial_max():
    s = S0
    out = [V(f"v_max3_f32 v{PM}, v{s}, v{s + 1}, v{s + 2}")]
    for i in range(6):
        out.append(V(f"v_max3_f32 v{PM}, v{PM}, v{s + 3 + 2 * i}, v{s + 4 + 2 * i}"))
    out.append(V(f"v_max_f32 v{PM}, v{PM}, v{s + 15}"))
    return out


def nc(lst):
    if not NOC:
        return lst
    return [x for x in lst if x.kind not in ("mfma", "valu", "trans", "permlane", "dsr")]


p = Prog()

lane, t0, t1, t2, t3 = 1, 2, 3, 4, 5
pro = [
    SA("s_cmp_ge_u32 s2, 256"),
    BR("s_cbranch_scc1", "L_END"),
    RAW(f"s_load_dwordx4 s[{sQB}:{sQB + 3}], s[0:1], 0"),
    RAW(f"s_load_dwordx4 s[{sVB}:{sVB + 3}], s[0:1], 16"),
    V(f"v_lshrrev_b32 v{t0}, 6, v0"),
    V(f"v_and_b32 v{lane}, 63, v0"),
    V(f"v_readfirstlane_b32 s{sW}, v{t0}"),
    V(f"v_lshrrev_b32 v{t1}, 4, v{lane}"),
    V(f"v_and_b32 v{t2}, 15, v{lane}"),
    V(f"v_lshlrev_b32 v{t3}, 11, v{t0}"),
    V(f"v_lshl_add_u32 v{t3}, v{t1}, 8, v{t3}"),
    V(f"v_and_b32 v{DK0}, 1, v{t0}"),
    V(f"v_lshlrev_b32 v{DK0}, 3, v{DK0}"),
    V(f"v_or_b32 v{DK0}, v{DK0}, v{t1}"),
    V(f"v_xor_b32 v{DK0}, v{DK0}, v{t2}"),
    V(f"v_lshl_add_u32 v{DK0}, v{DK0}, 4, v{t3}"),
    V(f"v_xor_b32 v{DK1}, 64, v{DK0}"),
    V(f"v_lshlrev_b32 v{DV}, 2, v{t1}"),
    V(f"v_xor_b32 v{DV}, v{DV}, v{t2}"),
    V(f"v_lshl_add_u32 v{DV}, v{DV}, 4, v{t3}"),
    SA(f"s_lshl_b32 s{sW2K}, s{sW}, 11"),
    SA(f"s_mov_b32 s{AS + 3}, 0x20000"),
    SA(f"s_mov_b32 s{BS + 3}, 0x20000"),
    SA(f"s_mov_b32 s{OS + 3}, 0x20000"),
    SA(f"s_mov_b32 s{AS + 2}, {QBYTES}"),
    SA(f"s_mov_b32 s{BS + 2}, {QBYTES}"),
    SA(f"s_mov_b32 s{OS + 2}, 0"),
    SA(f"s_lshl_b32 s{sOFFA}, s2, 16"),
    SA(f"s_add_u32 s{sOFFB}, s{sOFFA}, 16384"),
    SA(f"s_mov_b32 s{sOOFF}, s{sOFFA}"),
    SA(f"s_add_u32 s{sQOFF}, s{sOFFA}, {1 << 24}"),
    RAW("s_waitcnt lgkmcnt(0)"),
    SA(f"s_mov_b64 s[{AS}:{AS + 1}], s[{sQB}:{sQB + 1}]"),
    SA(f"s_mov_b64 s[{BS}:{BS + 1}], s[{sQB}:{sQB + 1}]"),
    SA(f"s_mov_b64 s[{OS}:{OS + 1}], s[{sOB}:{sOB + 1}]"),
    dma_group(f"s_add_u32 m0, s{sW2K}, {2 * SLOT}", f"s_add_u32 m0, s{sW2K}, {2 * SLOT + 16384}"),
    SA(f"s_add_u32 s{sOFFA}, s{sOFFA}, 32768"),
    SA(f"s_add_u32 s{sOFFB}, s{sOFFB}, 32768"),
    dma_group(f"s_add_u32 m0, s{sW2K}, {3 * SLOT}", f"s_add_u32 m0, s{sW2K}, {3 * SLOT + 16384}"),
    SA(f"s_mov_b64 s[{AS}:{AS + 1}], s[{sKB}:{sKB + 1}]"),
    SA(f"s_mov_b64 s[{BS}:{BS + 1}], s[{sVB}:{sVB + 1}]"),
    SA(f"s_mov_b32 s{AS + 2}, {KBYTES}"),
    SA(f"s_mov_b32 s{BS + 2}, {KBYTES}"),
    SA(f"s_lshl_b32 s{sOFFA}, s2, 17"),
    SA(f"s_add_u32 m0, s{sW2K}, {4 * SLOT}"),
    DMA(DK0, AS, sOFFA, 0, LDF),
    DMA(DK1, AS, sOFFA, 1024, LDF),
    adv_kv(),
    dma_group(f"s_mov_b32 m0, s{sW2K}", f"s_add_u32 m0, s{sW2K}, 16384"),
    adv_kv(),
    SA(f"s_mov_b32 s{sIT}, 7"),
    SA(f"s_mov_b32 s{sJ}, 7"),
    SA(f"s_mov_b32 s{sRD}, {4 * SLOT}"),
    SA(f"s_add_u32 s{sWR}, s{sW2K}, {1 * SLOT}"),
    SA(f"s_mov_b32 s{sOINC}, 0"),
    SA(f"s_mov_b32 s{sC}, {hex(f2u(CSCALE))}"),
    SA(f"s_mov_b32 s{sNC}, {hex(f2u(-CSCALE))}"),
    V(f"v_lshrrev_b32 v{t0}, 5, v{lane}"),
    V(f"v_and_b32 v{t3}, 31, v{lane}"),
    V(f"v_xor_b32 v{KA}, v{t0}, v{t2}"),
    V(f"v_lshlrev_b32 v{KA}, 4, v{KA}"),
    V(f"v_lshl_add_u32 v{KA}, v{t3}, 8, v{KA}"),
    SA(f"s_lshl_b32 s{sT0}, s{sW}, 13"),
    V(f"v_lshlrev_b32 v{OOFF}, 4, v{t0}"),
    V(f"v_lshl_add_u32 v{OOFF}, v{t3}, 8, v{OOFF}"),
    V(f"v_add_u32 v{OOFF}, s{sT0}, v{OOFF}"),
    V(f"v_and_b32 v{QP}, 3, v{lane}"),
    V(f"v_lshlrev_b32 v{QP}, 2, v{QP}"),
    V(f"v_xor_b32 v{QP}, v{QP}, v{t0}"),
    V(f"v_lshlrev_b32 v{QP}, 4, v{QP}"),
    V(f"v_lshl_add_u32 v{QP}, v{t3}, 8, v{QP}"),
    SA(f"s_bitcmp1_b32 s{sW}, 1"),
    BR("s_cbranch_scc1", "L_QV"),
    V(f"v_mov_b32 v{QP}, v{KA}"),
    LABEL("L_QV"),
    SA(f"s_add_u32 s{sT0}, s{sT0}, {2 * SLOT}"),
    V(f"v_add_u32 v{QP}, s{sT0}, v{QP}"),
    V(f"v_add_u32 v{KA}, s{sRD}, v{KA}"),
    [V(f"v_xor_b32 v{KA + ks}, {ks << 5}, v{KA}") for ks in range(1, 8)],
    V(f"v_bfe_u32 v{t1}, v{lane}, 2, 2"),
    V(f"v_lshl_add_u32 v{t2}, v{t0}, 2, v{t1}"),
    V(f"v_lshlrev_b32 v{VA}, 8, v{t2}"),
    V(f"v_lshl_add_u32 v{VA}, v{t1}, 6, v{VA}"),
    V(f"v_bfe_u32 v{t2}, v{lane}, 4, 1"),
    V(f"v_lshl_add_u32 v{VA}, v{t2}, 5, v{VA}"),
    V(f"v_and_b32 v{t2}, 1, v{lane}"),
    V(f"v_lshl_add_u32 v{VA}, v{t2}, 4, v{VA}"),
    V(f"v_bfe_u32 v{t2}, v{lane}, 1, 1"),
    V(f"v_lshl_add_u32 v{VA}, v{t2}, 3, v{VA}"),
    V(f"v_add_u32 v{VA}, s{sRD}, v{VA}"),
    [V(f"v_xor_b32 v{VA + b}, {b << 6}, v{VA}") for b in range(1, 4)],
]
if opts["prio"]:
    pro += [SA(f"s_cmp_lt_u32 s{sW}, 4"), BR("s_cbranch_scc1", "L_NOPRIO"), RAW("s_setprio 1"), LABEL("L_NOPRIO")]
pro += [BR("s_branch", "L_TOP7")]
p.block("pro", pro)

p.block("w12", [LABEL("L_W12"), WAIT(vm=12)])
p.block("w20", [LABEL("L_W20"), WAIT(vm=20, lgkm=0), BAR()])

dmaA = dma_group(f"s_mov_b32 m0, s{sWR}", f"s_add_u32 m0, s{sWR}, 16384")
fillA = merge(k_reads(0), dmaA) + max_finish() + exp_block(S0, P0)
eb = fillA
idx = next(i for i, x in enumerate(eb) if x.text.startswith(f"v_add_f32 v{L},"))
eb.insert(idx, V(f"v_mul_f32 v{L}, v{L}, v{ALPHA}"))
secA = [LABEL("L_A")] + nc(interleave(pv_mfmas(P1), eb)) + [
    SA(f"s_add_u32 s{sT0}, s{sJ}, 1"),
    SA(f"s_and_b32 s{sT0}, s{sT0}, 7"),
    SA(f"s_cmp_lt_u32 s{sT0}, 2"),
    BR("s_cbranch_scc1", "L_MID"),
]
p.block("A", secA)

resc = [V(f"v_mul_f32 v{O + i}, v{O + i}, v{ALPHA}") for i in range(64)]
vr = v_reads(0)
fillB = vr[:6] + merge(vr[6:], resc[:20]) + resc[20:]
secB = [LABEL("L_B"), WAIT(lgkm=0)] + nc(interleave(qk_mfmas(S0), fillB))
p.block("B", secB)

eb = exp_block(S1, P1)
kr = k_reads(1)
fillC = merge(kr, eb[:24]) + eb[24:]
secC = [LABEL("L_C"), WAIT(lgkm=0)] + nc(interleave(pv_mfmas(P0), fillC))
p.block("C", secC)

salu1 = [
    SA(f"s_sub_u32 s{sT0}, s{sJ}, 2"),
    SA(f"s_cmp_lt_u32 s{sT0}, 3"),
    BR("s_cbranch_scc1", "L_ADVQ"),
] + adv_kv() + [LABEL("L_ADVRET")]
salu2 = [
    SA(f"s_add_u32 s{sIT}, s{sIT}, 1"),
    SA(f"s_and_b32 s{sJ}, s{sIT}, 7"),
    SA(f"s_add_u32 s{sWR}, s{sRD}, s{sW2K}"),
    SA(f"s_lshl_b32 s{sT0}, s{sJ}, 2"),
    SA(f"s_lshr_b32 s{sT0}, 0x41043210, s{sT0}"),
    SA(f"s_and_b32 s{sT0}, s{sT0}, 7"),
    SA(f"s_lshl_b32 s{sT0}, s{sT0}, 15"),
    SA(f"s_sub_u32 s{sDELTA}, s{sT0}, s{sRD}"),
    SA(f"s_mov_b32 s{sRD}, s{sT0}"),
]
addr_upd = [V(f"v_add_u32 v{KA + i}, s{sDELTA}, v{KA + i}") for i in range(8)] + \
           [V(f"v_add_u32 v{VA + i}, s{sDELTA}, v{VA + i}") for i in range(4)]
mfD = qk_mfmas(S1)
vr = v_reads(1)
secD = [LABEL("L_D"), WAIT(lgkm=0)] + nc(interleave(mfD[:4], vr)) + salu1 + \
       nc(interleave(mfD[4:], merge(salu2, partial_max()) + addr_upd)) + [
    SA(f"s_sub_u32 s{sT0}, s{sJ}, 1"),
    SA(f"s_cmp_lt_u32 s{sT0}, 4"),
    BR("s_cbranch_scc1", "L_W20"),
    SA(f"s_cmp_lt_u32 s{sT0}, 6"),
    BR("s_cbranch_scc1", "L_W12"),
    SA(f"s_cmp_eq_u32 s{sJ}, 7"),
    BR("s_cbranch_scc1", "L_TOP7"),
]
p.block("D", secD)

p.block("top0", [
    LABEL("L_TOP0"),
    V(f"v_mov_b32 v{LFIN}, v{L}"),
    V(f"v_mov_b32 v{L}, 0"),
    V(f"v_mov_b32 v{M}, 0xff800000"),
    V(f"v_mov_b32 v{NMC}, 0x7f800000"),
    BR("s_branch", "L_W12"),
])

qr = []
for ks in range(8):
    qr.append(V(f"v_xor_b32 v{Q + 4 * ks}, {ks << 5}, v{QP}"))
for ks in range(8):
    qr.append(DSR("ds_read_b128", Q + 4 * ks, 4, Q + 4 * ks, 0))
p.block("top7", [LABEL("L_TOP7")] + nc(qr[:8]) + [WAIT(vm=4, lgkm=0), BAR()] + nc(qr[8:]) + [BR("s_branch", "L_A")])

p.block("mid", [
    LABEL("L_MID"),
    SA(f"s_cmp_eq_u32 s{sJ}, 0"),
    BR("s_cbranch_scc1", "L_EPI"),
])
p.block("mid7", [
    WAIT(lgkm=0),
    BAR(),
    adv_kv(),
    dma_group(f"s_add_u32 m0, s{sW2K}, {2 * SLOT}", f"s_add_u32 m0, s{sW2K}, {2 * SLOT + 16384}"),
    adv_kv(),
    dma_group(f"s_add_u32 m0, s{sW2K}, {3 * SLOT}", f"s_add_u32 m0, s{sW2K}, {3 * SLOT + 16384}"),
    BR("s_branch", "L_B"),
])

epi = [
    V(f"v_mov_b32 v{T1}, v{LFIN}"),
    None,
    V(f"v_permlane32_swap_b32 v{LFIN}, v{T1}"),
    V(f"v_add_f32 v{T0}, v{LFIN}, v{T1}"),
    V(f"v_rcp_f32 v{T0}, v{T0}"),
]
epi = [x for x in epi if x]
body = []
for b in range(4):
    o = O + 16 * b
    body += [V(f"v_mul_f32 v{o + i}, v{o + i}, v{T0}") for i in range(16)]
    body += [V(f"v_cvt_pk_bf16_f32 v{o + i}, v{o + 2 * i}, v{o + 2 * i + 1}") for i in range(8)]
    body += [STORE4(o, OOFF, OS, sOOFF, 64 * b, STF), STORE4(o + 4, OOFF, OS, sOOFF, 64 * b + 32, STF)]
    body += [V(f"v_mov_b32 v{o + i}, 0") for i in range(8, 16)]
    body += [V(f"v_mov_b32 v{o + i}, 0") for i in range(0, 8)]
vr = v_reads(0)
fillE = merge(vr, epi) + body
secE = [LABEL("L_EPI"), WAIT(lgkm=0)] + nc(interleave(qk_mfmas(S0), fillE)) + [
    SA(f"s_add_u32 s{sOOFF}, s{sOOFF}, s{sOINC}"),
    SA(f"s_mov_b32 s{sOINC}, {1 << 24}"),
    SA(f"s_mov_b32 s{OS + 2}, {0 if opts['nostore'] else QBYTES}"),
    SA(f"s_cmp_lt_u32 s{sIT}, 40"),
    BR("s_cbranch_scc1", "L_C"),
    WAIT(vm=0, lgkm=0),
    LABEL("L_END"),
    RAW("s_endpgm"),
]
p.block("epi", secE)

p.block("advq", [
    LABEL("L_ADVQ"),
    SA(f"s_cmp_eq_u32 s{sJ}, 3"),
    BR("s_cbranch_scc1", "L_ADV3"),
    SA(f"s_cmp_eq_u32 s{sJ}, 4"),
    BR("s_cbranch_scc1", "L_ADV4"),
    SA(f"s_mov_b32 s{sVSV}, s{sOFFA}"),
    SA(f"s_add_u32 s{sKSV}, s{sOFFA}, {16384 + (255 << 17)}"),
    SA(f"s_mov_b64 s[{AS}:{AS + 1}], s[{sQB}:{sQB + 1}]"),
    SA(f"s_mov_b64 s[{BS}:{BS + 1}], s[{sQB}:{sQB + 1}]"),
    SA(f"s_mov_b32 s{AS + 2}, {QBYTES}"),
    SA(f"s_mov_b32 s{BS + 2}, {QBYTES}"),
    SA(f"s_mov_b32 s{sOFFA}, s{sQOFF}"),
    SA(f"s_add_u32 s{sOFFB}, s{sQOFF}, 16384"),
    BR("s_branch", "L_ADVRET"),
    LABEL("L_ADV3"),
    SA(f"s_add_u32 s{sOFFA}, s{sOFFA}, 32768"),
    SA(f"s_add_u32 s{sOFFB}, s{sOFFB}, 32768"),
    BR("s_branch", "L_ADVRET"),
    LABEL("L_ADV4"),
    SA(f"s_mov_b64 s[{AS}:{AS + 1}], s[{sKB}:{sKB + 1}]"),
    SA(f"s_mov_b64 s[{BS}:{BS + 1}], s[{sVB}:{sVB + 1}]"),
    SA(f"s_mov_b32 s{AS + 2}, {KBYTES}"),
    SA(f"s_mov_b32 s{BS + 2}, {KBYTES}"),
    SA(f"s_mov_b32 s{sOFFA}, s{sKSV}"),
    SA(f"s_mov_b32 s{sOFFB}, s{sVSV}"),
    SA(f"s_add_u32 s{sQOFF}, s{sQOFF}, {1 << 24}"),
    BR("s_branch", "L_ADVRET"),
])

paths = [
    ["pro", "top7", "A", "mid", "mid7", "B", "C", "D", "top0", "w12", "w20", "A", "mid", "epi", "C", "D", "w20", "A",
     "B", "C", "D", "w20", "A", "B", "C", "D", "top7", "A", "mid", "mid7", "B"],
]
n = p.fix_hazards(paths)
ok = p.check_lgkm(paths)
print(f"inserted {n} wait states; lgkm ok={ok}")
assert ok

hdr = open("standalone__mha_softmax__near_ridge.s.ref").read().split("; Override")[0]
text = hdr + f"""; @launch grid=(256,1,1) block=(512,1,1) lds=163840
.amdgcn_target "amdgcn-amd-amdhsa--gfx950"
.text
.globl {KNAME}
.p2align 8
.type {KNAME},@function
{KNAME}:
{p.text()}
.section .rodata,"a"
.p2align 6
.amdhsa_kernel {KNAME}
  .amdhsa_next_free_vgpr {NVGPR}
  .amdhsa_next_free_sgpr {NSGPR}
  .amdhsa_accum_offset {NVGPR}
  .amdhsa_group_segment_fixed_size 0
  .amdhsa_kernarg_size 48
  .amdhsa_user_sgpr_count 2
  .amdhsa_user_sgpr_kernarg_segment_ptr 1
  .amdhsa_system_sgpr_workgroup_id_x 1
.end_amdhsa_kernel
"""
open(sys.argv[1], "w").write(text)
```
